```python
import torch

def _softmax(x, axis=-1):
    return torch.softmax(x, dim=axis)

def _gelu(x):
    return torch.nn.functional.gelu(x, approximate='tanh')

def _silu(x):
    return torch.nn.functional.silu(x)

def _sigmoid(x):
    return torch.sigmoid(x)

def _layernorm(x, axis=-1, eps=1e-05):
    m = x.mean(dim=axis, keepdim=True)
    v = x.var(dim=axis, keepdim=True, unbiased=False)
    return (x - m) / torch.sqrt(v + eps)

def _scatter_add(tgt, idx, src, axis=0):
    return tgt.clone().index_add_(axis, idx, src)

def _segment_sum(src, seg, n):
    out = torch.zeros((n,) + src.shape[1:], dtype=src.dtype)
    return out.index_add_(0, seg, src)

def _pad(x, pw):
    flat = tuple((v for pair in reversed(pw) for v in pair))
    return torch.nn.functional.pad(x, flat)
kernel_name = 'adaLN_cond__mha_block_cached__dense_activation_silu__decode'

def setup_inputs():

    _w = lambda a: (lambda t: t.to(torch.bfloat16) if t.is_floating_point() else t)(torch.as_tensor(a))

    def _A_setup():
        B, Sq, D = (4, 1, 512)
        H, Sk, Dh = (32, 4096, 128)
        return {'x': _w((lambda *s: torch.randn(*s, dtype=torch.bfloat16) * 0.1)(B, Sq, D)), 'k_cache': _w((lambda *s: torch.randn(*s, dtype=torch.bfloat16) * 0.8)(B, H, Sk, Dh)), 'v_cache': _w((lambda *s: torch.randn(*s, dtype=torch.bfloat16) * 3.2)(B, H, Sk, Dh)), 'wq': _w((lambda *s: torch.randn(*s, dtype=torch.bfloat16) * 0.8)(D, H * Dh) * D ** (-0.5)), 'wo': _w((lambda *s: torch.randn(*s, dtype=torch.bfloat16) * 3.2)(H * Dh, D) * (H * Dh) ** (-0.5))}
    _A_in = _A_setup()

    def _B_setup():
        B, S, D, F = (4, 1, 512, 1792)
        return {'x': _w((lambda *s: torch.randn(*s, dtype=torch.bfloat16) * 0.1)(B, S, D)), 'w1': _w((lambda *s: torch.randn(*s, dtype=torch.bfloat16) * 3.2)(D, F) * D ** (-0.5)), 'w2': _w((lambda *s: torch.randn(*s, dtype=torch.bfloat16) * 3.2)(F, D) * F ** (-0.5))}
    _B_in = _B_setup()
    return {'A_x': _A_in['x'], 'A_k_cache': _A_in['k_cache'], 'A_v_cache': _A_in['v_cache'], 'A_wq': _A_in['wq'], 'A_wo': _A_in['wo'], 'B_x': _B_in['x'], 'B_w1': _B_in['w1'], 'B_w2': _B_in['w2'], 'c': _w((lambda *s: torch.randn(*s, dtype=torch.bfloat16) * 0.1)(4, 512) * 8.0), 'w_mod': _w((lambda *s: torch.randn(*s, dtype=torch.bfloat16) * 0.1)(512, 6 * 512) * 512 ** (-0.5) * 8.0)}

def reference(A_x, A_k_cache, A_v_cache, A_wq, A_wo, B_x, B_w1, B_w2, c, w_mod):

    def _A_ref(x, k_cache, v_cache, wq, wo):
        B, Sq, D = x.shape
        H, Dh = (32, 128)
        q = (lambda x, *d: x.permute(*d))((x @ wq).reshape(B, Sq, H, Dh), 0, 2, 1, 3)
        scores = torch.einsum('bhqd,bhkd->bhqk', q, k_cache) * Dh ** (-0.5)
        p = _softmax(scores, axis=-1)
        o = torch.einsum('bhqk,bhkd->bhqd', p, v_cache)
        return (lambda x, *d: x.permute(*d))(o, 0, 2, 1, 3).reshape(B, Sq, H * Dh) @ wo

    def _B_ref(x, w1, w2):
        h = torch.einsum('bsd,df->bsf', x, w1)
        h = _silu(h)
        out = torch.einsum('bsf,fd->bsd', h, w2)
        return out
    x = A_x
    mod = (_silu(c) @ w_mod).reshape(c.shape[0], 6, 1, -1)
    sa, ca, ga, sb, cb, gb = (mod[:, 0].clone(), mod[:, 1].clone(), mod[:, 2].clone(), mod[:, 3].clone(), mod[:, 4].clone(), mod[:, 5].clone())
    h = _layernorm(x, axis=-1) * (1 + ca) + sa
    x = x + ga * _A_ref(h, A_k_cache, A_v_cache, A_wq, A_wo)
    h = _layernorm(x, axis=-1) * (1 + cb) + sb
    x = x + gb * _B_ref(h, B_w1, B_w2)
    return x
```

```python
import re
TRANS = ("v_exp_f32", "v_log_f32", "v_rcp_f32", "v_rsq_f32", "v_sqrt_f32")
def regs(op):
    op = op.strip()
    op = op.lstrip("-").replace("abs(", "").replace(")", "").strip("|")
    m = re.fullmatch(r"([vs])\[(\d+):(\d+)\]", op)
    if m: return [m.group(1) + str(i) for i in range(int(m.group(2)), int(m.group(3)) + 1)]
    if re.fullmatch(r"[vs]\d+", op): return [op]
    if op == "vcc": return ["vcc"]
    if op == "m0": return ["m0"]
    return []
def parse(line):
    t = line.split(None, 1)
    mn = t[0]; ops = []
    if len(t) > 1:
        parts = t[1].split(",")
        s = re.sub(r"quad_perm:\[[^\]]*\]", "quad_perm", t[1])
        s = re.sub(r"hwreg\([^)]*\)", "hwreg", s)
        ops = [p.strip().split()[0] if p.strip() else "" for p in s.split(",")]
    return mn, ops
def hazards(lines):
    out = []; pos = 0; last = {}
    for ln in lines:
        s = ln.split(";")[0].strip()
        if not s or s.endswith(":") or s.startswith("."):
            out.append(ln); continue
        mn, ops = parse(s)
        R = [regs(o) for o in ops]
        need = 0
        def chk(kind, rs, n):
            nonlocal need
            for r in rs:
                p = last.get((kind, r))
                if p is not None: need = max(need, n - (pos - p - 1))
        flat = [r for x in R for r in x]
        vs = lambda l: [r for r in l if r[0] == "v" and r != "vcc"]
        ss = lambda l: [r for r in l if r[0] == "s" or r == "vcc"]
        is_mfma = mn.startswith("v_mfma"); is_valu = mn.startswith("v_") and not is_mfma
        is_dot = mn.startswith("v_dot"); is_vmem = mn.startswith(("buffer_", "global_")); is_ds = mn.startswith("ds_")
        wr = []
        if is_valu:
            dst = R[0]; src = [r for x in R[1:] for r in x]
            if "swap" in mn: dst = R[0] + R[1]; src = dst
            if mn.startswith(("v_fmac", "v_dot2c")) or "dpp" in mn: src = src + R[0]
            if "dpp" in mn: chk("valu", vs(R[1]), 2); chk("ld", [], 0)
            if "permlane" in mn: chk("valu", vs(src), 2)
            if mn.startswith(("v_readlane", "v_readfirstlane")): chk("valu", vs(R[1]), 1)
            if not mn.startswith(TRANS): chk("trans", vs(src), 1)
            chk("vsgpr", ss(src), 2)
            chk("mfma", vs(src) + vs(dst), 8)
            chk("mfmac", vs(dst), 3)
            chk("wst", vs(dst), 2)
            if is_dot:
                chk("dot", vs(R[1] + R[2]), 3)
                for r in vs(R[0]):
                    p = last.get(("dot", r))
                    if p is not None and last.get(("dotop", r)) != mn: need = max(need, 3 - (pos - p - 1))
            else: chk("dot", vs(src) + vs(dst), 3)
            wr = [("valu", r) for r in vs(dst)] + [("vsgpr", r) for r in ss(dst)]
            if mn.startswith(TRANS): wr += [("trans", r) for r in vs(dst)]
            if is_dot:
                wr += [("dot", r) for r in vs(dst)]
                for r in vs(dst): last[("dotop", r)] = mn
        elif is_mfma:
            chk("valu", vs(R[1] + R[2] + R[3]), 2); chk("dot", vs(flat), 3)
            chk("mfma", vs(R[1] + R[2]), 8)
            if R[3] != R[0]: chk("mfma", vs(R[3]) + vs(R[0]), 8)
            wr = [("mfma", r) for r in R[0]] + [("mfmac", r) for r in vs(R[3])]
        elif is_vmem or is_ds:
            chk("mfma", vs(flat), 8); chk("dot", vs(flat), 3); chk("trans", vs(flat), 1)
            if is_vmem: chk("vsgpr", ss(flat), 5)
            if " lds" in s: chk("m0", ["m0"], 1)
            if is_vmem and "store" in mn and ("x4" in mn or "x3" in mn): wr = [("wst", r) for r in vs(R[0])]
            if "load" in mn or "read" in mn: chk("wst", vs(R[0]), 1)
        elif mn.startswith("s_"):
            if ops and ops[0] == "m0": wr = [("m0", "m0")]
            if mn != "s_nop" and R:
                for r in R[0]: last.pop(("vsgpr", r), None) if not mn.startswith(("s_cmp", "s_cbranch")) else None
        while need > 0:
            k = min(need, 16); out.append(f"    s_nop {k-1}"); pos += k; need -= k
        out.append(ln)
        if is_valu or is_mfma:
            for k, r in wr:
                if k in ("valu", "mfma"):
                    for kk in ("valu", "mfma", "trans", "dot"): last.pop((kk, r), None)
        for w in wr: last[w] = pos
        pos += (int(ops[0]) + 1) if mn == "s_nop" else 1
    return out
```

```python
import sys, re
from asmlib import hazards
NAME = "adaLN_cond__mha_block_cached__dense_activation_silu__decode"
HEADER = open("cdna_kernels/" + NAME + ".s.ref").read().split("; Override launch")[0]
WS_MOD, WS_ML, WS_X1, WS_H1, WS_Y = 0x1000, 0x10000, 0x20000, 0x24000, 0x40000
L_W16 = 131072; L_SM = 147456
L_BOUNCE = L_SM; L_P1 = L_SM + 4096; L_QP = L_SM + 6144; L_O = L_SM + 10240; L_H2 = L_SM; L_T3 = L_SM
K, V, WQ, WO, W1, W2, X, C, WM, OUT, WS = [f"s[{4*i}:{4*i+3}]" for i in range(1, 12)]
TAG, W, XCD, SLOT, B, H, SP, KVB = "s48", "s49", "s50", "s51", "s52", "s53", "s54", "s55"
LOG2E = 1.4426950408889634
import struct
def f2u(x): return "0x%08x" % struct.unpack("<I", struct.pack("<f", x))[0]

def gen(fn, D=3, RING=28, POLL=15, stamps=False, wnt="", WO0=44, D0=3, MLSTEP=108, spin=1 << 15, opts=()):
    L = []; vm = []
    def A(s):
        for x in s.split("\n"):
            x = x.strip()
            if x: L.append(x if x.endswith(":") else "    " + x)
    def VM(name, s): A(s); vm.append(name)
    def WAIT(name):
        n = len(vm) - 1 - max(i for i, x in enumerate(vm) if x == name)
        assert n < 64; A(f"s_waitcnt vmcnt({n})")
    def LG(n=0): A(f"s_waitcnt lgkmcnt({0 if stamps else n})")
    def q(r, n=4): return f"v[{r}:{r+n-1}]"
    def STAMP(k):
        if stamps: A(f"s_memrealtime s[{76+2*k}:{77+2*k}]")
    lab = [0]
    def gather(loads, first_masks=None):
        lab[0] += 1; n = lab[0]
        for i in range(len(loads)):
            m = first_masks[i] if first_masks else -1
            if m == -1: A(f"s_mov_b64 s[{58+2*i}:{59+2*i}], -1")
            else: A(f"s_mov_b32 s{58+2*i}, 0x{m & 0xffffffff:x}\ns_mov_b32 s{59+2*i}, 0x{m >> 32:x}")
        A(f"s_mov_b32 s57, {spin}\nL_g{n}:")
        for i, (wd, r, vo, so, im) in enumerate(loads):
            A(f"s_mov_b64 exec, s[{58+2*i}:{59+2*i}]\ns_cbranch_execz L_g{n}_{i}")
            A(f"buffer_load_dwordx{wd} {q(r, wd)}, {vo}, {WS}, {so} offen offset:{im} sc1\nL_g{n}_{i}:")
        A("s_waitcnt vmcnt(0)\ns_mov_b64 s[2:3], 0" if False else "s_waitcnt vmcnt(0)")
        check(loads)
        A(f"s_cbranch_scc0 L_g{n}_x\ns_sub_u32 s57, s57, 1\ns_cbranch_scc0 L_g{n}\nL_g{n}_x:\ns_mov_b64 exec, -1")
    def check(loads):
        for i, (wd, r, vo, so, im) in enumerate(loads):
            m = f"s[{58+2*i}:{59+2*i}]"
            A(f"s_mov_b64 exec, {m}\nv_cmp_ne_u32 {m}, {TAG}, v{r+1}")
            if wd == 4: A(f"v_cmp_ne_u32 vcc, {TAG}, v{r+3}\ns_or_b64 {m}, {m}, vcc")
        A(f"s_or_b64 s[100:101], s[58:59], s[58:59]")
        for i in range(1, len(loads)): A(f"s_or_b64 s[100:101], s[100:101], s[{58+2*i}:{59+2*i}]")
    def early(name, ld):
        wd, r, vo, so, im = ld
        VM(name, f"buffer_load_dwordx{wd} {q(r, wd)}, {vo}, {WS}, {so} offen offset:{im} sc1")
    def settle(name, ld):
        WAIT(name); lab[0] += 1; n = lab[0]
        A("s_mov_b64 s[58:59], -1"); check([ld]); A(f"s_cbranch_scc0 L_ok{n}"); gather([ld]); A(f"L_ok{n}:")
    def allred(op, rs, tmp, rowsteps, rows=True):
        for st in rowsteps:
            for r in rs: A(f"{op}_dpp v{r}, v{r}, v{r} {st} row_mask:0xf bank_mask:0xf")
        if rows:
            for sw in ("16", "32"):
                for r, t in zip(rs, tmp): A(f"v_mov_b32 v{t}, v{r}")
                for r, t in zip(rs, tmp): A(f"v_permlane{sw}_swap_b32 v{r}, v{t}")
                for r, t in zip(rs, tmp): A(f"{op} v{r}, v{r}, v{t}")
    FULL = ["quad_perm:[1,0,3,2]", "quad_perm:[2,3,0,1]", "row_half_mirror", "row_ror:8"]
    def unpack(src, dst):
        for i, s in enumerate(src): A(f"v_lshlrev_b32 v{dst+2*i}, 16, v{s}\nv_and_b32 v{dst+2*i+1}, 0xffff0000, v{s}")
    def silu(rs, ts):
        for r, t in zip(rs, ts): A(f"v_mul_f32 v{t}, {f2u(-LOG2E)}, v{r}")
        for t in ts: A(f"v_exp_f32 v{t}, v{t}")
        for t in ts: A(f"v_add_f32 v{t}, 1.0, v{t}")
        for t in ts: A(f"v_rcp_f32 v{t}, v{t}")
        for r, t in zip(rs, ts): A(f"v_mul_f32 v{r}, v{r}, v{t}")
    def lnstats(x, s, t):
        A(f"v_add_f32 v{s}, v{x}, v{x+1}\nv_add_f32 v{t}, v{x+2}, v{x+3}\nv_add_f32 v{s+1}, v{x+4}, v{x+5}\nv_add_f32 v{t+1}, v{x+6}, v{x+7}")
        A(f"v_add_f32 v{s}, v{s}, v{t}\nv_add_f32 v{s+1}, v{s+1}, v{t+1}\nv_add_f32 v{s}, v{s}, v{s+1}")
        allred("v_add_f32", [s], [t], FULL)
        A(f"v_mul_f32 v{s}, {f2u(1/512)}, v{s}")
        for i in range(8): A(f"v_sub_f32 v{x+i}, v{x+i}, v{s}")
        A(f"v_mul_f32 v{s+1}, v{x}, v{x}\nv_mul_f32 v{t+1}, v{x+1}, v{x+1}")
        for i in range(2, 8): A(f"v_fmac_f32 v{(s if i % 2 == 0 else t) + 1}, v{x+i}, v{x+i}")
        A(f"v_add_f32 v{s+1}, v{s+1}, v{t+1}")
        allred("v_add_f32", [s+1], [t], FULL)
        A(f"v_mov_b32 v{t}, {f2u(1e-5)}\nv_fmac_f32 v{t}, {f2u(1/512)}, v{s+1}\nv_rsq_f32 v{s+1}, v{t}")
    def dma(name, vo, srd, so, m0expr, flags, cond=False):
        A(m0expr); s = f"buffer_load_dwordx4 {vo}, {srd}, {so} offen {flags} lds"
        A(s) if cond else VM(name, s)
    LANE, G, C16 = 1, 2, 3
    VKV, VT16 = 4, 5
    MASK, QV, Z, WB, RB = 40, 44, 48, 80, 144
    MW, ACC = 6, 36
    slot = lambda i: RB + 4 * (i % RING)

    A("s_cmp_ge_u32 s2, 256\ns_cbranch_scc1 L_end")
    if stamps:
        for k in range(12): A(f"s_mov_b32 s{76+2*k}, 0")
    STAMP(0)
    for srd, off in ((WM, 72), (C, 64), (X, 0), (K, 8), (WQ, 24), (WS, 96), (V, 16), (WO, 32), (W1, 48), (W2, 56), (OUT, 80)):
        r = int(srd[2:srd.index(":")]); A(f"s_load_dwordx2 s[{r}:{r+1}], s[0:1], {off}")
    for srd, sz in ((K, 1 << 27), (V, 1 << 27), (WQ, 4 << 20), (WO, 4 << 20), (W1, 1835008), (W2, 1835008), (X, 4096), (C, 4096), (WM, 3 << 20), (OUT, 4096), (WS, (80 << 20) if stamps else (2 << 20))):
        r = int(srd[2:srd.index(":")]); A(f"s_mov_b32 s{r+2}, {sz}\ns_mov_b32 s{r+3}, 0x20000")
    A(f"""v_lshrrev_b32 v{LANE}, 6, v0
    s_and_b32 {XCD}, s2, 7
    s_lshr_b32 {SLOT}, s2, 3
    v_readfirstlane_b32 {W}, v{LANE}
    v_and_b32 v{LANE}, 63, v0
    v_lshrrev_b32 v{G}, 4, v{LANE}
    v_and_b32 v{C16}, 15, v0
    v_lshlrev_b32 v{VKV}, 4, v0
    s_lshr_b32 {B}, {SLOT}, 3
    s_bfe_u32 {H}, {SLOT}, 0x20001
    s_lshl_b32 s56, {XCD}, 2
    s_add_u32 {H}, {H}, s56
    s_and_b32 {SP}, {SLOT}, 1
    s_lshl_b32 {KVB}, {B}, 5
    s_add_u32 {KVB}, {KVB}, {H}
    s_lshl_b32 {KVB}, {KVB}, 1
    s_add_u32 {KVB}, {KVB}, {SP}
    s_lshl_b32 {KVB}, {KVB}, 19
    ; P1 tile -> s3
    s_and_b32 s3, {SLOT}, 3
    s_add_u32 s3, s3, s56
    s_lshr_b32 s56, {SLOT}, 2
    s_lshl_b32 s56, s56, 5
    s_add_u32 s3, s3, s56
    v_lshrrev_b32 v8, 1, v{LANE}
    v_and_b32 v9, 1, v0
    v_lshlrev_b32 v9, 4, v9
    v_mul_u32_u24 v{VT16}, 6144, v8
    v_add_u32 v{VT16}, v{VT16}, v9
    v_lshlrev_b32 v10, 10, v{G}
    v_lshl_add_u32 v10, v{C16}, 3, v10
    v_lshlrev_b32 v11, 4, v{LANE}
    v_and_b32 v12, 31, v0
    v_lshlrev_b32 v12, 2, v12
    v_lshlrev_b32 v13, 1, v{G}
    v_xor_b32 v13, v13, v{C16}
    v_lshlrev_b32 v13, 4, v13
    v_lshl_add_u32 v13, v{G}, 13, v13
    v_xor_b32 v14, 128, v13
    s_mul_i32 s56, {W}, {64*6144}
    s_lshl_b32 s57, s3, 5
    s_add_u32 s56, s56, s57
    s_add_u32 s57, s56, {32*6144}
    s_lshl_b32 s58, {W}, 11
    s_lshl_b32 s59, {W}, 7
    s_lshl_b32 s60, {B}, 10
    s_add_u32 s61, s60, s59
    s_lshl_b32 s74, {W}, 19
    s_lshl_b32 s75, {H}, 8
    s_add_u32 s74, s74, s75
    s_lshl_b32 s75, {W}, 14
    s_waitcnt lgkmcnt(0)
    s_load_dword {TAG}, s[44:45], 0
    s_cmp_ge_u32 {SLOT}, 24
    s_cbranch_scc1 L_nop1a""")
    dma("wm0", f"v{VT16}", WM, "s56", f"s_add_u32 m0, s58, {L_W16}", wnt, True)
    dma("wm1", f"v{VT16}", WM, "s57", f"s_add_u32 m0, s58, {L_W16+1024}", wnt, True)
    A(f"buffer_load_dwordx2 v[16:17], v10, {C}, s59 offen\nL_nop1a:")
    VM("xrow", f"buffer_load_dwordx4 v[20:23], v11, {X}, s60 offen")
    VM("xpair", f"buffer_load_dword v15, v12, {X}, s61 offen")

    def issue(i):
        A(f"s_add_u32 s56, {KVB}, {(i % 64) * 8192}")
        VM(f"s{i}", f"buffer_load_dwordx4 {q(slot(i))}, v{VKV}, {K if i < 64 else V}, s56 offen nt")
    def wq(j):
        A(f"s_add_u32 s56, s74, {j * 4 * 8192}")
        dma(f"wq{j}", "v14" if (j >> 1) & 1 else "v13", WQ, "s56", f"s_add_u32 m0, s75, {j*1024}", wnt)
    def wo(j):
        A(f"s_add_u32 s56, s74, {j * 8 * 1024}")
        dma(f"wo{j}", "v13", WO, "s56", f"s_add_u32 m0, s75, {j*1024}", wnt)
    def ev_p1():
        WAIT("xrow")
        A(f"s_cmp_ge_u32 {SLOT}, 24\ns_cbranch_scc1 L_nop1b")
        STAMP(1)
        unpack([16, 17], 24); silu([24, 25, 26, 27], [28, 29, 30, 31])
        A(f"""v_cvt_pk_bf16_f32 v24, v24, v25
        v_cvt_pk_bf16_f32 v25, v26, v27
        s_lshl_b32 s56, {W}, 9
        s_add_u32 s56, s56, {L_BOUNCE}
        v_lshl_add_u32 v8, v{LANE}, 3, s56
        ds_write_b64 v8, v[24:25]
        v_and_b32 v9, 3, v0
        v_lshlrev_b32 v18, 6, v9
        v_lshl_add_u32 v9, v9, 7, s56
        v_lshl_add_u32 v9, v{G}, 4, v9
        s_add_u32 s56, s58, {L_W16}
        v_lshl_add_u32 v8, v{G}, 8, s56
        v_lshl_add_u32 v8, v{C16}, 3, v8""")
        for j in range(4): A(f"ds_read_b64_tr_b16 v[{48+2*j}:{49+2*j}], v8 offset:{(j >> 1) * 1024 + (j & 1) * 128}")
        A(f"""ds_read_b128 v[24:27], v9
        ds_read_b128 v[28:31], v9 offset:64
        s_lshl_b32 s56, {W}, 8
        s_add_u32 s56, s56, {L_P1}
        v_lshl_add_u32 v18, v{G}, 4, v18
        v_add_u32 v18, s56, v18
        s_waitcnt lgkmcnt(0)
        v_mfma_f32_16x16x32_bf16 v[32:35], v[48:51], v[24:27], 0
        v_mfma_f32_16x16x32_bf16 v[32:35], v[52:55], v[28:31], v[32:35]
        ds_write_b128 v18, v[32:35]
        s_waitcnt lgkmcnt(0)
        s_barrier
        s_cmp_lg_u32 {W}, 0
        s_cbranch_scc1 L_nop1b
        v_lshlrev_b32 v8, 1, v12""")
        for w in range(8): A(f"ds_read_b64 v[{48+2*w}:{49+2*w}], v8 offset:{L_P1 - 131072 + w*256}" if False else f"ds_read_b64 v[{48+2*w}:{49+2*w}], v19 offset:{w*256}")
        L.insert(len(L) - 8, f"    v_add_u32 v19, {L_P1}, v8")
        A(f"""v_bfe_u32 v8, v0, 3, 2
        v_mul_u32_u24 v8, 12288, v8
        v_and_b32 v9, 7, v0
        v_lshl_add_u32 v8, v9, 3, v8
        s_lshl_b32 s56, s3, 6
        s_add_u32 s56, s56, {WS_MOD}
        s_add_u32 s57, {TAG}, 0x9e3779b1
        s_waitcnt lgkmcnt(0)""")
        for a, b_ in ((48, 50), (52, 54), (56, 58), (60, 62), (48, 52), (56, 60), (48, 56)): A(f"v_pk_add_f32 v[{a}:{a+1}], v[{a}:{a+1}], v[{b_}:{b_+1}]")
        A(f"""v_cvt_pk_bf16_f32 v48, v48, v49
        v_mov_b32 v49, s57
        s_mov_b32 exec_hi, 0
        buffer_store_dwordx2 v[48:49], v8, {WS}, s56 offen sc1
        s_mov_b64 exec, -1""")
        STAMP(2)
        A(f"L_nop1b:\ns_waitcnt lgkmcnt(0)\ns_add_u32 {TAG}, {TAG}, 0x9e3779b1")
    def ev_ln():
        unpack([20, 21, 22, 23], 24); lnstats(24, 16, 18)
        WAIT("xpair"); unpack([15], 18)
        A("v_sub_f32 v18, v18, v16\nv_sub_f32 v19, v19, v16\nv_mul_f32 v18, v18, v17\nv_mul_f32 v19, v19, v17")
        A(f"""v_lshrrev_b32 v15, 5, v{LANE}
        v_lshlrev_b32 v15, 11, v15
        v_lshl_add_u32 v15, v12, 1, v15
        s_mul_i32 s72, {B}, 12288
        s_lshl_b32 s56, {W}, 8
        s_add_u32 s72, s72, s56
        s_add_u32 s72, s72, {WS_MOD}
        v_and_b32 v8, 1, v0
        v_lshlrev_b32 v8, 4, v8
        v_mov_b32 v9, 0xffff
        v_lshlrev_b32 v8, v8, v9
        v_lshrrev_b32 v9, 1, v{C16}""")
        for d in range(4): A(f"v_cmp_eq_u32 vcc, {d}, v9\nv_cndmask_b32 v{MASK+d}, 0, v8, vcc")
    modld = (2, 16, "v15", "s72", 0)
    def ev_wqread():
        WAIT("wq15")
        A(f"""v_bfe_u32 v8, v0, 2, 2
        v_and_b32 v9, 1, v{G}
        v_lshl_add_u32 v9, v9, 2, v8
        v_lshlrev_b32 v9, 5, v9
        v_lshl_add_u32 v9, v8, 8, v9
        v_lshl_add_u32 v9, v{G}, 11, v9
        v_and_b32 v8, 3, v0
        v_lshl_add_u32 v9, v8, 3, v9
        v_add_u32 v9, s75, v9""")
        for t in range(8):
            A(f"v_xor_b32 v{24+t}, {32*t}, v9")
        for t in range(8):
            for j in range(4): A(f"ds_read_b64_tr_b16 v[{WB+8*t+2*j}:{WB+8*t+2*j+1}], v{24+t} offset:{(j >> 1) * 8192 + (j & 1) * 1024}")
    def ev_q1():
        settle("mod", modld); STAMP(3)
        A("v_mov_b32 v17, v16\nv_permlane32_swap_b32 v16, v17")
        unpack([16, 17], 20)
        A(f"""v_add_f32 v22, 1.0, v22
        v_add_f32 v23, 1.0, v23
        v_fmac_f32 v20, v18, v22
        v_fmac_f32 v21, v19, v23
        s_lshl_b32 s56, {W}, 9
        s_add_u32 s57, s56, {L_BOUNCE}
        v_add_u32 v8, s57, v12
        v_cvt_pk_bf16_f32 v20, v20, v21
        v_lshl_add_u32 v9, v{G}, 4, s57
        ds_write_b32 v8, v20
        ds_read_b128 v[24:27], v9
        ds_read_b128 v[28:31], v9 offset:64
        s_add_u32 s57, s56, {L_QP}
        v_lshl_add_u32 v8, v{G}, 4, s57
        s_waitcnt lgkmcnt(0)""")
        for t in range(8): A(f"v_mfma_f32_16x16x32_bf16 {q(48+4*t)}, {q(WB+8*t)}, v[24:27], 0")
        for t in range(8): A(f"v_mfma_f32_16x16x32_bf16 {q(48+4*t)}, {q(WB+8*t+4)}, v[28:31], {q(48+4*t)}")
        A("s_mov_b32 exec_lo, 0x00010001\ns_mov_b32 exec_hi, 0x00010001")
        for t in range(8): A(f"ds_write_b128 v8, {q(48+4*t)} offset:{64*t}")
        A("s_mov_b64 exec, -1")
    def ev_q2():
        A(f"v_lshlrev_b32 v8, 5, v{C16}\nv_add_u32 v8, {L_QP}, v8\ns_waitcnt lgkmcnt(0)\ns_barrier")
        for w in range(8): A(f"ds_read_b128 {q(WB+8*w)}, v8 offset:{512*w}\nds_read_b128 {q(WB+8*w+4)}, v8 offset:{512*w+16}")
    def ev_q3():
        A("s_waitcnt lgkmcnt(0)")
        for a, b_ in ((0, 1), (2, 3), (4, 5), (6, 7), (0, 2), (4, 6), (0, 4)):
            for i in range(4): A(f"v_pk_add_f32 {q(WB+8*a+2*i, 2)}, {q(WB+8*a+2*i, 2)}, {q(WB+8*b_+2*i, 2)}")
        for i in range(4): A(f"v_cvt_pk_bf16_f32 v{QV+i}, v{WB+2*i}, v{WB+2*i+1}")
        A(f"""v_lshrrev_b32 v13, 3, v{LANE}
        v_lshlrev_b32 v13, 10, v13
        v_and_b32 v8, 7, v0
        v_lshl_add_u32 v13, v8, 4, v13
        s_lshl_b32 s74, {H}, 17
        s_lshl_b32 s56, {W}, 7
        s_add_u32 s74, s74, s56""")
        STAMP(4)
    def kgroup(n):
        for i in range(4): A(f"v_dot2_f32_bf16 v{24+i}, v{slot(4*n+i)}, v{QV}, 0")
        for d in range(1, 4):
            for i in range(4): A(f"v_dot2_f32_bf16 v{24+i}, v{slot(4*n+i)+d}, v{QV+d}, v{24+i}")
        A(f"""v_add_f32_dpp v28, v24, v24 row_ror:8 row_mask:0xf bank_mask:0x3
        v_add_f32_dpp v28, v25, v25 row_ror:8 row_mask:0xf bank_mask:0xc
        v_add_f32_dpp v29, v26, v26 row_ror:8 row_mask:0xf bank_mask:0x3
        v_add_f32_dpp v29, v27, v27 row_ror:8 row_mask:0xf bank_mask:0xc
        v_add_f32_dpp v30, v28, v28 row_half_mirror row_mask:0xf bank_mask:0x5
        v_add_f32_dpp v30, v29, v29 row_half_mirror row_mask:0xf bank_mask:0xa
        v_add_f32_dpp v30, v30, v30 quad_perm:[2,3,0,1] row_mask:0xf bank_mask:0xf
        v_add_f32_dpp v{Z+n}, v30, v30 quad_perm:[1,0,3,2] row_mask:0xf bank_mask:0xf""")
    SC = 128 ** -0.5 * LOG2E
    def ev_softmax():
        A(f"v_max3_f32 v{MW}, v{Z}, v{Z+1}, v{Z+2}\nv_max3_f32 v8, v{Z+3}, v{Z+4}, v{Z+5}")
        for i in range(6, 16, 2): A(f"v_max3_f32 v{MW if i % 4 else 8}, v{MW if i % 4 else 8}, v{Z+i}, v{Z+i+1}")
        A(f"v_max_f32 v{MW}, v{MW}, v8")
        allred("v_max_f32", [MW], [8], FULL[2:])
        A(f"s_mov_b32 s56, {f2u(SC)}\nv_mul_f32 v{MW}, s56, v{MW}")
        for i in range(16): A(f"v_fma_f32 v{Z+i}, v{Z+i}, s56, -v{MW}")
        for i in range(16): A(f"v_exp_f32 v{Z+i}, v{Z+i}")
        A(f"v_pk_add_f32 v[26:27], {q(Z, 2)}, {q(Z+2, 2)}")
        for i in range(4, 16, 2): A(f"v_pk_add_f32 v[26:27], v[26:27], {q(Z+i, 2)}")
        A("v_add_f32 v26, v26, v27")
        for i in range(16): A(f"v_cvt_pk_bf16_f32 v{Z+i}, v{Z+i}, v{Z+i}")
        allred("v_add_f32", [26], [8], FULL[2:])
        A(f"""v_mov_b32 v24, v{MW}
        v_mov_b32 v25, {TAG}
        v_mov_b32 v27, {TAG}
        s_lshr_b32 s73, {KVB}, 20
        s_lshl_b32 s73, s73, 8
        s_add_u32 s73, s73, {WS_ML}
        s_lshl_b32 s56, {SP}, 3
        s_add_u32 s56, s56, {W}
        s_lshl_b32 s56, s56, 4
        v_mov_b32 v8, s56
        v_lshlrev_b32 v15, 4, v{C16}
        s_mov_b64 exec, 1""")
        VM("mlst", f"buffer_store_dwordx4 v[24:27], v8, {WS}, s73 offen sc1")
        A("s_mov_b64 exec, -1"); STAMP(5)
    def vload(j):
        bank = (0, 2, 1, 3)[j & 3]; a = 28 if j & 1 else 32
        for d in range(4): A(f"v_and_b32_dpp v{a+d}, v{Z + (j >> 2)}, v{MASK+d} row_newbcast:{4*bank} row_mask:0xf bank_mask:0xf")
        A(f"v_mfma_f32_16x16x32_bf16 {q(ACC)}, {q(a)}, {q(slot(64+j))}, {q(ACC) if j else 0}")
    def ev_woread():
        WAIT("wo15")
        A(f"""v_bfe_u32 v8, v0, 2, 2
        v_lshlrev_b32 v9, 7, v8
        v_lshl_add_u32 v9, v{G}, 10, v9
        v_and_b32 v8, 3, v0
        v_lshl_add_u32 v9, v8, 3, v9
        v_add_u32 v9, s75, v9""")
        for t in range(4):
            for j in range(8): A(f"ds_read_b64_tr_b16 v[{WB+16*t+2*j}:{WB+16*t+2*j+1}], v9 offset:{(j >> 1) * 4096 + (j & 1) * 512 + 32*t}")
    mlld = (4, 16, "v15", "s73", 0)
    def ev_ml():
        settle("ml", mlld)
        A("v_mov_b32 v17, v16"); allred("v_max_f32", [17], [], FULL, False)
        A(f"v_sub_f32 v16, v16, v17\nv_sub_f32 v{MW}, v{MW}, v17\nv_exp_f32 v16, v16\nv_exp_f32 v{MW}, v{MW}\nv_mul_f32 v18, v18, v16")
        allred("v_add_f32", [18], [], FULL, False)
        A(f"v_rcp_f32 v18, v18\nv_mul_f32 v{MW}, v{MW}, v18")
        A(f"""s_mul_i32 s56, {W}, 272
        s_add_u32 s56, s56, {L_O}
        v_lshl_add_u32 v10, v{C16}, 4, s56
        v_lshl_add_u32 v10, v{G}, 3, v10
        v_and_b32 v11, 7, v0
        v_mul_u32_u24 v11, 272, v11
        v_lshl_add_u32 v11, v{G}, 4, v11
        v_add_u32 v11, {L_O}, v11
        v_lshlrev_b32 v12, 13, v{G}
        v_lshl_add_u32 v12, v{C16}, 3, v12
        s_lshl_b32 s72, {B}, 18
        s_lshl_b32 s56, {W}, 15
        s_add_u32 s72, s72, s56
        s_lshl_b32 s56, {H}, 8
        s_add_u32 s72, s72, s56
        s_lshl_b32 s56, {SP}, 7
        s_add_u32 s72, s72, s56
        s_add_u32 s72, s72, {WS_Y}
        v_mov_b32 v21, {TAG}
        s_waitcnt lgkmcnt(0)""")
    ev = {}
    def at(i, f): ev.setdefault(i, []).append(f)
    for j in range(16): at(j * 3 // 4, lambda j=j: wq(j))
    at(D0 - 1, ev_p1); at(D0 + 1, ev_ln)
    at(POLL, lambda: early("mod", modld)); at(POLL + 1, ev_wqread); at(POLL + D, ev_q1); at(POLL + D + 1, ev_q2); at(POLL + D + 2, ev_q3)
    for j in range(16): at(WO0 + 2 * j, lambda j=j: wo(j))
    at(WO0 + 40, ev_woread)
    at(MLSTEP, lambda: early("ml", mlld)); at(MLSTEP + D + 1, ev_ml)
    kdone = 0; vdone = 0; sm = False
    for i in range(128 + D):
        if i >= D: WAIT(f"s{i-D}")
        if i < 128:
            assert i < RING or (4 * kdone > i - RING if i - RING < 64 else vdone > i - RING - 64), i
            issue(i)
        for f in ev.get(i, []): f()
        if i > POLL + D + 2 and kdone < 16 and 4 * kdone + 3 <= i - D:
            kgroup(kdone); kdone += 1
            if kdone == 16: ev_softmax(); sm = True
        elif sm:
            for _ in range(2):
                if vdone < 64 and 64 + vdone <= i - D: vload(vdone); vdone += 1
    assert vdone == 64
    STAMP(6)
    for r in range(4): A(f"v_mul_f32 v{ACC+r}, v{ACC+r}, v{MW}")
    A(f"""v_cvt_pk_bf16_f32 v{ACC}, v{ACC}, v{ACC+1}
    v_cvt_pk_bf16_f32 v{ACC+1}, v{ACC+2}, v{ACC+3}
    s_mov_b32 exec_hi, 0
    ds_write_b64 v10, {q(ACC, 2)}
    s_mov_b64 exec, -1
    s_waitcnt lgkmcnt(0)
    s_barrier""")
    for s in range(4): A(f"ds_read_b128 {q(48+4*s)}, v11 offset:{64*s}")
    for s in range(4):
        LG(3 - s)
        for t in range(4): A(f"v_mfma_f32_16x16x32_bf16 {q(64+4*t)}, {q(48+4*s)}, {q(WB+16*t+4*s)}, {q(64+4*t) if s else 0}")
    for t in range(4): A(f"v_pk_add_f32 {q(64+4*t, 2)}, {q(64+4*t, 2)}, {q(66+4*t, 2)}")
    for t in range(4): A(f"v_add_f32 v{64+4*t}, v{64+4*t}, v{65+4*t}")
    A(f"""v_permlane16_swap_b32 v64, v68
    v_permlane16_swap_b32 v72, v76
    v_add_f32 v20, v64, v68
    v_add_f32 v72, v72, v76
    v_permlane32_swap_b32 v20, v72
    buffer_store_dwordx2 v[20:21], v12, {WS}, s72 offen sc1""")
    STAMP(7)
    A(f"s_cmp_ge_u32 s2, 224\ns_cbranch_scc1 L_t3\ns_cmp_ge_u32 s2, 112\ns_cbranch_scc1 L_t2\ns_cmp_ge_u32 s2, 64\ns_cbranch_scc1 L_done\ns_cmp_ge_u32 {W}, 2\ns_cbranch_scc1 L_done")
    A(f"""s_lshl_b32 s3, s2, 1
    s_add_u32 s3, s3, {W}
    s_lshl_b32 s72, s3, 13
    s_add_u32 s72, s72, {WS_Y}
    s_add_u32 s73, s72, 4096
    v_lshlrev_b32 v8, 4, v{LANE}
    v_and_b32 v9, 7, v0
    v_lshlrev_b32 v10, 2, v9
    v_lshlrev_b32 v9, 3, v9
    s_lshl_b32 s56, s3, 5
    buffer_load_dword v15, v10, {X}, s56 offen
    s_lshr_b32 s74, s3, 5
    s_mul_i32 s74, s74, 12288
    s_and_b32 s56, s3, 31
    s_lshl_b32 s56, s56, 6
    s_add_u32 s74, s74, s56
    s_add_u32 s74, s74, {WS_MOD + 4096}""")
    gather([(2, 16, "v9", "s74", 0)])
    unpack([15, 16], 24)
    A(f"s_mov_b32 s74, s72\ns_mov_b32 s75, s73\ns_lshl_b32 s3, s3, 6\ns_add_u32 s3, s3, {WS_X1}")
    gather([(4, RB + 4*i, "v8", "s74" if i < 4 else "s75", (i & 3) * 1024) for i in range(8)])
    STAMP(8)
    for a, b_ in ((0, 1), (2, 3), (4, 5), (6, 7), (0, 2), (4, 6), (0, 4)):
        A(f"v_add_f32 v{RB+4*a}, v{RB+4*a}, v{RB+4*b_}\nv_add_f32 v{RB+4*a+2}, v{RB+4*a+2}, v{RB+4*b_+2}")
    allred("v_add_f32", [RB, RB+2], [RB+1, RB+3], ["row_ror:8"])
    A(f"""v_fmac_f32 v24, v26, v{RB}
    v_fmac_f32 v25, v27, v{RB+2}
    v_cvt_pk_bf16_f32 v20, v24, v25
    s_mov_b64 exec, 0xff
    buffer_store_dwordx2 v[20:21], v9, {WS}, s3 offen sc1
    s_mov_b64 exec, -1""")
    STAMP(9)
    A("s_branch L_done")
    A(f"""L_t2:
    s_mul_i32 s3, {XCD}, 14
    s_add_u32 s3, s3, {SLOT}
    s_sub_u32 s3, s3, 14
    v_lshrrev_b32 v8, 1, v{LANE}
    v_and_b32 v9, 1, v0
    v_lshlrev_b32 v9, 4, v9
    v_mul_u32_u24 v8, 3584, v8
    v_add_u32 v8, v8, v9
    s_mul_i32 s56, {W}, {64*3584}
    s_lshl_b32 s57, s3, 5
    s_add_u32 s56, s56, s57
    s_add_u32 s57, s56, {32*3584}
    s_lshl_b32 s58, {W}, 11""")
    dma("", "v8", W1, "s56", f"s_add_u32 m0, s58, {L_W16}", wnt, True)
    dma("", "v8", W1, "s57", f"s_add_u32 m0, s58, {L_W16+1024}", wnt, True)
    A(f"""s_waitcnt vmcnt(0)
    s_barrier
    s_cmp_gt_u32 {W}, 4
    s_cbranch_scc1 L_done
    s_cbranch_scc1 L_done
    s_cmp_eq_u32 {W}, 4
    s_cbranch_scc1 L_t2m
    v_lshlrev_b32 v8, 5, v{LANE}
    s_mul_i32 s74, {W}, 12288
    s_add_u32 s74, s74, {WS_MOD + 6144}
    s_lshl_b32 s75, {W}, 11
    s_add_u32 s75, s75, {WS_X1}""")
    gather([(4, RB + 4*i, "v8", "s74", (i >> 1) * 2048 + (i & 1) * 16) for i in range(4)])
    unpack([RB + 2*i for i in range(8)], 48)
    for i in range(8): A(f"v_add_f32 v{56+i}, 1.0, v{56+i}")
    A(f"s_mul_i32 s56, {W}, 1040\ns_add_u32 s56, s56, {L_H2}\nv_lshl_add_u32 v9, v{LANE}, 4, s56")
    gather([(4, RB + 4*i, "v8", "s75", i * 16) for i in range(2)])
    STAMP(8)
    unpack([RB + 2*i for i in range(4)], 24); lnstats(24, 16, 18)
    for i in range(8): A(f"v_mul_f32 v{24+i}, v{24+i}, v{56+i}")
    for i in range(8): A(f"v_fmac_f32 v{48+i}, v{24+i}, v17")
    for i in range(4): A(f"v_cvt_pk_bf16_f32 v{24+i}, v{48+2*i}, v{49+2*i}")
    A("ds_write_b128 v9, v[24:27]\ns_waitcnt lgkmcnt(0)\ns_barrier")
    STAMP(9)
    A(f"""s_branch L_done
    L_t2m:
    v_lshlrev_b32 v8, 8, v{G}
    v_lshl_add_u32 v8, v{C16}, 3, v8
    v_add_u32 v8, {L_W16}, v8""")
    for j in range(32): A(f"ds_read_b64_tr_b16 v[{WB+2*j}:{WB+2*j+1}], v8 offset:{(j >> 1) * 1024 + (j & 1) * 128}")
    A(f"""v_and_b32 v9, 3, v0
    v_lshlrev_b32 v10, 4, v9
    v_lshl_add_u32 v10, v{G}, 6, v10
    v_mul_u32_u24 v9, 1040, v9
    v_lshl_add_u32 v9, v{G}, 4, v9
    v_add_u32 v9, {L_H2}, v9
    s_lshl_b32 s3, s3, 8
    s_add_u32 s3, s3, {WS_H1}
    v_mov_b32 v23, {TAG}
    s_waitcnt lgkmcnt(0)
    s_barrier""")
    for s in range(16): A(f"ds_read_b128 {q(RB+4*s)}, v9 offset:{64*s}")
    for s in range(16):
        LG(15 - s); a = 24 + 4 * (s & 1)
        A(f"v_mfma_f32_16x16x32_bf16 {q(a)}, {q(WB+4*s)}, {q(RB+4*s)}, {q(a) if s > 1 else 0}")
    A("v_pk_add_f32 v[24:25], v[24:25], v[28:29]\nv_pk_add_f32 v[26:27], v[26:27], v[30:31]")
    silu([24, 25, 26, 27], [28, 29, 30, 31])
    A(f"""v_cvt_pk_bf16_f32 v20, v24, v25
    v_cvt_pk_bf16_f32 v22, v26, v27
    s_mov_b32 exec_lo, 0x000f000f
    s_mov_b32 exec_hi, 0x000f000f
    buffer_store_dwordx4 v[20:23], v10, {WS}, s3 offen sc1
    s_mov_b64 exec, -1
    s_branch L_done""")
    A(f"""L_t3:
    s_and_b32 s3, {SLOT}, 3
    s_lshl_b32 s56, {XCD}, 2
    s_add_u32 s3, s3, s56
    v_lshrrev_b32 v8, 1, v{LANE}
    v_and_b32 v9, 1, v0
    v_lshlrev_b32 v9, 4, v9
    v_lshl_add_u32 v8, v8, 10, v9
    s_mul_i32 s74, {W}, {224*1024}
    s_lshl_b32 s57, s3, 5
    s_add_u32 s74, s74, s57""")
    for j in range(7):
        A(f"s_add_u32 s56, s74, {j*32*1024}"); dma("", "v8", W2, "s56", f"s_add_u32 m0, s75, {j*1024}", wnt, True)
    A(f"""v_lshlrev_b32 v8, 8, v{G}
    v_lshl_add_u32 v8, v{C16}, 3, v8
    v_add_u32 v8, s75, v8
    v_bfe_u32 v9, v0, 2, 2
    v_lshlrev_b32 v9, 9, v9
    v_lshl_add_u32 v9, v{G}, 7, v9
    v_and_b32 v10, 3, v0
    v_lshl_add_u32 v9, v10, 4, v9
    s_mul_i32 s74, {W}, {7*512}
    s_add_u32 s74, s74, {WS_H1}
    s_lshl_b32 s56, {W}, 10
    s_add_u32 s56, s56, {L_T3}
    v_lshl_add_u32 v10, v{LANE}, 4, s56
    s_waitcnt vmcnt(0)""")
    for j in range(14): A(f"ds_read_b64_tr_b16 v[{WB+2*j}:{WB+2*j+1}], v8 offset:{(j >> 1) * 1024 + (j & 1) * 128}")
    A(f"""s_cmp_lg_u32 {W}, 0
    s_cbranch_scc1 L_t3g
    v_lshrrev_b32 v11, 1, v{C16}
    v_lshlrev_b32 v11, 3, v11
    v_lshl_add_u32 v12, v{G}, 11, v11
    v_mul_u32_u24 v13, 12288, v{G}
    v_add_u32 v11, v11, v13
    s_lshl_b32 s56, s3, 6
    s_add_u32 s72, s56, {WS_MOD + 10240}
    s_add_u32 s73, s56, {WS_X1}""")
    gather([(2, 16, "v11", "s72", 0), (2, 18, "v12", "s73", 0)])
    A(f"""v_and_b32 v11, 1, v0
    v_lshlrev_b32 v11, 4, v11
    v_lshrrev_b32 v16, v11, v16
    v_lshrrev_b32 v18, v11, v18
    v_lshlrev_b32 v16, 16, v16
    v_lshlrev_b32 v18, 16, v18
    v_lshlrev_b32 v12, 10, v{G}
    v_lshl_add_u32 v12, v{C16}, 1, v12
    s_lshl_b32 s3, s3, 5
    L_t3g:""")
    m7 = 0x0fff0fff0fff0fff
    gather([(4, RB + 4*i, "v9", "s74", (i >> 1) * 2048 + (i & 1) * 64) for i in range(4)], [-1, -1, m7, m7])
    STAMP(8)
    for i in range(2):
        r = RB + 8*i
        A(f"v_mov_b32 v{r+1}, v{r+2}\nv_mov_b32 v{r+2}, v{r+4}\nv_mov_b32 v{r+3}, v{r+6}")
    A("s_waitcnt lgkmcnt(0)")
    for s in range(7): A(f"v_mfma_f32_16x16x32_bf16 {q(48+4*(s&3))}, {q(RB+8*(s>>2))}, {q(WB+4*s)}, {q(48+4*(s&3)) if s > 3 else 0}")
    for kq in (3, 0, 1, 2):
        A(f"s_mov_b32 exec_lo, 0x{(0xffff << (16*kq)) & 0xffffffff:x}\ns_mov_b32 exec_hi, 0x{(0xffff << (16*kq)) >> 32:x}\nds_write_b128 v10, {q(48+4*kq)}")
    A(f"s_mov_b64 exec, -1\ns_waitcnt lgkmcnt(0)\ns_barrier\ns_cmp_lg_u32 {W}, 0\ns_cbranch_scc1 L_done")
    for w in range(8): A(f"ds_read_b128 {q(RB+4*w)}, v10 offset:{1024*w}")
    for k, (a, b_) in enumerate(((0, 1), (2, 3), (4, 5), (6, 7), (0, 2), (4, 6), (0, 4))):
        if k < 4: LG(6 - 2*k)
        A(f"v_pk_add_f32 {q(RB+4*a, 2)}, {q(RB+4*a, 2)}, {q(RB+4*b_, 2)}\nv_pk_add_f32 {q(RB+4*a+2, 2)}, {q(RB+4*a+2, 2)}, {q(RB+4*b_+2, 2)}")
    A(f"""v_permlane16_swap_b32 v{RB}, v{RB+1}
    v_permlane16_swap_b32 v{RB+2}, v{RB+3}
    v_add_f32 v{RB}, v{RB}, v{RB+1}
    v_add_f32 v{RB+2}, v{RB+2}, v{RB+3}
    v_permlane32_swap_b32 v{RB}, v{RB+2}
    v_add_f32 v{RB}, v{RB}, v{RB+2}
    v_fmac_f32 v18, v16, v{RB}
    v_cvt_pk_bf16_f32 v18, v18, v18
    buffer_store_short v18, v12, {OUT}, s3 offen
    s_cmp_lg_u32 s3, 0
    s_cbranch_scc1 L_t3e
    v_mov_b32 v8, 0
    s_mov_b64 exec, 1
    buffer_store_dword v21, v8, {WS}, 0 offen sc1
    s_mov_b64 exec, -1
    L_t3e:""")
    STAMP(9)
    A("L_done:")
    if stamps:
        A(f"s_waitcnt vmcnt(0)"); STAMP(10)
        A(f"s_waitcnt lgkmcnt(0)\ns_cmp_lg_u32 {W}, 0\ns_cbranch_scc1 L_end\ns_lshl_b32 s3, s2, 6\ns_add_u32 s3, s3, {64 << 20}\nv_mov_b32 v8, 0\ns_mov_b64 exec, 1")
        for k in range(12): A(f"v_mov_b32 v{12+k}, s{76+2*k}")
        for k in range(3): A(f"buffer_store_dwordx4 {q(12+4*k)}, v8, {WS}, s3 offen offset:{16*k}")
    A("L_end:\ns_endpgm")
    body = "\n".join(hazards(L))
    open(fn, "w").write(HEADER + f"""; @launch grid=(256,1,1) block=(512,1,1) lds=163840
.amdgcn_target "amdgcn-amd-amdhsa--gfx950"
.text
.globl {NAME}_kernel
.p2align 8
.type {NAME}_kernel,@function
{NAME}_kernel:
{body}
.section .rodata,"a"
.p2align 6
.amdhsa_kernel {NAME}_kernel
  .amdhsa_next_free_vgpr 256
  .amdhsa_next_free_sgpr 102
  .amdhsa_accum_offset 256
  .amdhsa_group_segment_fixed_size 0
  .amdhsa_kernarg_size 104
  .amdhsa_user_sgpr_count 2
  .amdhsa_user_sgpr_kernarg_segment_ptr 1
  .amdhsa_system_sgpr_workgroup_id_x 1
.end_amdhsa_kernel
""")
if __name__ == "__main__":
    gen("k_base.s"); gen("k_st.s", stamps=True)
```
